```python
import torch

def _softmax(x, axis=-1):
    return torch.softmax(x, dim=axis)
def _gelu(x):
    return torch.nn.functional.gelu(x, approximate="tanh")
def _silu(x):
    return torch.nn.functional.silu(x)
def _sigmoid(x):
    return torch.sigmoid(x)
def _layernorm(x, axis=-1, eps=1e-5):
    m = x.mean(dim=axis, keepdim=True)
    v = x.var(dim=axis, keepdim=True, unbiased=False)
    return (x - m) / torch.sqrt(v + eps)
def _scatter_add(tgt, idx, src, axis=0):
    return tgt.clone().index_add_(axis, idx, src)
def _segment_sum(src, seg, n):
    out = torch.zeros((n,) + src.shape[1:], dtype=src.dtype)
    return out.index_add_(0, seg, src)
def _pad(x, pw):
    flat = tuple(v for pair in reversed(pw) for v in pair)
    return torch.nn.functional.pad(x, flat)

kernel_name = 'concat_heads__grouped_kv_mqa__ssm_conv_s4__prompt'

def setup_inputs():

    _w = (lambda a: (lambda t: t.to(torch.bfloat16) if t.is_floating_point() else t)(torch.as_tensor(a)))
    def _A_setup():
        B, S, D, H = 1, 2048, 512, 32
        Dh = D // H
        return {
            "x": _w((lambda *s: torch.randn(*s, dtype=torch.bfloat16) * 0.05)(B, S, D)),
            "wq": _w((lambda *s: torch.randn(*s, dtype=torch.bfloat16) * 0.8)(D, H * Dh)),
            "wk": _w((lambda *s: torch.randn(*s, dtype=torch.bfloat16) * 0.8)(D, Dh)),
            "wv": _w((lambda *s: torch.randn(*s, dtype=torch.bfloat16) * 0.05)(D, Dh)),
            "wo": _w((lambda *s: torch.randn(*s, dtype=torch.bfloat16) * 0.05)(H * Dh, D)),
        }
    _A_in = _A_setup()

    def _B_setup():
        B, L, D, N = 1, 2048, 512, 128
        A_re = -(lambda _x: torch.exp(torch.as_tensor(_x)))((lambda *s: torch.randn(*s, dtype=torch.bfloat16) * 3.2)(D, N))
        A_im = torch.pi * (lambda *s: torch.randn(*s, dtype=torch.bfloat16) * 0.05)(D, N)
        B_re = (lambda *s: torch.randn(*s, dtype=torch.bfloat16) * 0.1)(D, N)
        B_im = (lambda *s: torch.randn(*s, dtype=torch.bfloat16) * 0.1)(D, N)
        C_re = (lambda *s: torch.randn(*s, dtype=torch.bfloat16) * 0.1)(D, N)
        C_im = (lambda *s: torch.randn(*s, dtype=torch.bfloat16) * 0.1)(D, N)
        log_dt = (lambda *s: torch.randn(*s, dtype=torch.bfloat16) * 0.05)(D) * 0.5 - 4.0
        Dskip = (lambda *s: torch.randn(*s, dtype=torch.bfloat16) * 0.05)(D)
        return {
            "u": _w((lambda *s: torch.randn(*s, dtype=torch.bfloat16) * 0.05)(B, L, D)),
            "A_re": _w(A_re),
            "A_im": _w(A_im),
            "B_re": _w(B_re),
            "B_im": _w(B_im),
            "C_re": _w(C_re),
            "C_im": _w(C_im),
            "log_dt": _w(log_dt),
            "Dskip": _w(Dskip),
        }
    _B_in = _B_setup()

    return {
        "A_x": _A_in["x"],
        "A_wq": _A_in["wq"],
        "A_wk": _A_in["wk"],
        "A_wv": _A_in["wv"],
        "A_wo": _A_in["wo"],
        "B_u": _B_in["u"],
        "B_A_re": _B_in["A_re"],
        "B_A_im": _B_in["A_im"],
        "B_B_re": _B_in["B_re"],
        "B_B_im": _B_in["B_im"],
        "B_C_re": _B_in["C_re"],
        "B_C_im": _B_in["C_im"],
        "B_log_dt": _B_in["log_dt"],
        "B_Dskip": _B_in["Dskip"],
    }

def reference(A_x, A_wq, A_wk, A_wv, A_wo, B_u, B_A_re, B_A_im, B_B_re, B_B_im, B_C_re, B_C_im, B_log_dt, B_Dskip):
    def _A_ref(x, wq, wk, wv, wo):
        B, S, D = x.shape
        H = 32
        Dh = D // H
        q = (lambda x, *d: x.permute(*d))((x @ wq).reshape(B, S, H, Dh), 0, 2, 1, 3)
        k = x @ wk
        v = x @ wv
        scores = torch.einsum("bhqd,bkd->bhqk", q, k) * (Dh ** -0.5)
        p = _softmax(scores, axis=-1)
        o = torch.einsum("bhqk,bkd->bhqd", p, v)
        return (lambda x, *d: x.permute(*d))(o, 0, 2, 1, 3).reshape(B, S, H * Dh) @ wo

    def _B_ref(u, A_re, A_im, B_re, B_im, C_re, C_im, log_dt, Dskip):
        Bsz, L, D = u.shape
        dt = torch.exp(log_dt)[:, None]
        A = A_re + 1j * A_im
        Bc = B_re + 1j * B_im
        Cc = C_re + 1j * C_im
        logdA = dt * A
        dB = dt * Bc
        l = (lambda x, dt: x.to(dt))(torch.arange(L), A_re.dtype)
        P = torch.exp(logdA[:, :, None] * l[None, None, :])
        K = torch.einsum("dn,dnl,dn->dl", Cc, P, dB).real
        L2 = 2 * L
        Kp = _pad(K, ((0, 0), (0, L)))
        up = (lambda x, *d: x.permute(*d))(u, 0, 2, 1)
        up = _pad(up, ((0, 0), (0, 0), (0, L)))
        Kf = (lambda x, axes=(-2,-1): torch.fft.rfft2(x.float(), dim=axes))(Kp[:, None, :], axes=(-2, -1))
        Uf = (lambda x, axes=(-2,-1): torch.fft.rfft2(x.float(), dim=axes))(up[:, :, None, :], axes=(-2, -1))
        Yf = Uf * Kf[None, :, :, :]
        y = (lambda x, s, axes=(-2,-1): torch.fft.irfft2(x, s=s, dim=axes).to(torch.bfloat16))(Yf, (1, L2), axes=(-2, -1))[:, :, 0, :L]
        y = (lambda x, *d: x.permute(*d))(y, 0, 2, 1) + u * Dskip[None, None, :]
        return y

    a = _A_ref(A_x, A_wq, A_wk, A_wv, A_wo)
    b = _B_ref(B_u, B_A_re, B_A_im, B_B_re, B_B_im, B_C_re, B_C_im, B_log_dt, B_Dskip)
    return torch.concatenate([a, b], axis=-1)
```

```python
import re

TRANS = ("v_exp_f32", "v_log_f32", "v_rcp_f32", "v_rsq_f32", "v_sqrt_f32", "v_sin_f32", "v_cos_f32",
         "v_exp_f16", "v_rcp_iflag_f32")


def vr(a, n=1):
    return f"v{a}" if n == 1 else f"v[{a}:{a + n - 1}]"


def sr(a, n=1):
    return f"s{a}" if n == 1 else f"s[{a}:{a + n - 1}]"


_REG = re.compile(r"^-?(?:abs\(|\|)?([vsa])(?:(\d+)|\[(\d+):(\d+)\])\)?\|?$")


def regs_of(op):
    op = op.strip()
    m = _REG.match(op)
    if m:
        k = m.group(1)
        if m.group(2) is not None:
            return {(k, int(m.group(2)))}
        return {(k, i) for i in range(int(m.group(3)), int(m.group(4)) + 1)}
    if op in ("vcc", "vcc_lo", "vcc_hi"):
        return {("vcc", 0)}
    if op in ("exec", "exec_lo", "exec_hi"):
        return {("exec", 0)}
    if op == "m0":
        return {("m0", 0)}
    return set()


class Ins:
    __slots__ = ("text", "name", "ops", "kind", "rd", "wr", "passes", "srcc", "ab", "states", "stdata", "lds")

    def __init__(self, text):
        self.text = text
        t = text.split(";")[0].strip()
        self.rd = set()
        self.wr = set()
        self.passes = 0
        self.srcc = set()
        self.ab = set()
        self.states = 1
        self.stdata = set()
        self.lds = False
        if not t or t.endswith(":") or t.startswith("."):
            self.kind = "label" if t.endswith(":") else "dir"
            self.name = t
            self.ops = []
            self.states = 0
            return
        parts = t.split(None, 1)
        self.name = n = parts[0]
        rest = parts[1] if len(parts) > 1 else ""
        ops, depth, cur = [], 0, ""
        for ch in rest:
            if ch in "[(":
                depth += 1
            if ch in "])":
                depth -= 1
            if ch == "," and depth == 0:
                ops.append(cur.strip())
                cur = ""
            else:
                cur += ch
        if cur.strip():
            ops.append(cur.strip())
        mods = ""
        if ops:
            last = ops[-1].split(None, 1)
            ops[-1] = last[0]
            mods = last[1] if len(last) > 1 else ""
        self.ops = ops
        R = [regs_of(o) for o in ops]
        if n.startswith("v_mfma") or n.startswith("v_smfmac"):
            self.kind = "mfma"
            self.passes = 8 if "32x32" in n else 4
            self.wr = R[0]
            self.ab = R[1] | R[2]
            if n.startswith("v_smfmac"):
                self.srcc = R[0]
                self.ab |= R[3]
            else:
                self.srcc = R[3]
            self.rd = self.ab | self.srcc
        elif n.startswith("v_"):
            self.kind = "trans" if n.replace("_e32", "").replace("_e64", "") in TRANS else "valu"
            self.wr = set(R[0])
            for x in R[1:]:
                self.rd |= x
            if n.startswith("v_permlane") and "swap" in n:
                self.wr |= R[1]
                self.rd |= R[0]
            if n.startswith(("v_fmac", "v_pk_fmac", "v_writelane")) or "UNUSED_PRESERVE" in mods:
                self.rd |= R[0]
            if n.startswith(("v_add_co", "v_sub_co", "v_addc_co", "v_subb_co", "v_subrev_co")):
                self.wr |= R[1]
            if n.startswith("v_cmpx"):
                self.wr |= {("exec", 0)}
            if "dpp" in n or "row_" in mods or "quad_perm" in mods:
                self.kind = "dpp"
        elif n.startswith("ds_"):
            self.kind = "ds"
            if n.startswith(("ds_read", "ds_bpermute", "ds_permute", "ds_swizzle")):
                self.wr = R[0]
                for x in R[1:]:
                    self.rd |= x
            else:
                for x in R:
                    self.rd |= x
        elif n.startswith(("buffer_", "global_")):
            self.kind = "vmem"
            self.lds = bool(re.search(r"\blds\b", mods)) or "_lds_" in n
            if n in ("buffer_wbl2", "buffer_inv"):
                pass
            elif "load" in n and not self.lds:
                self.wr = R[0]
                for x in R[1:]:
                    self.rd |= x
                if "d16" in n:
                    self.rd |= R[0]
            else:
                for x in R:
                    self.rd |= x
                if "store" in n and ("x3" in n or "x4" in n):
                    self.stdata = R[0] if n.startswith("buffer_") else R[1]
            if self.lds:
                self.rd |= {("m0", 0)}
        elif n == "s_nop":
            self.kind = "nop"
            self.states = int(ops[0], 0) + 1
        elif n.startswith("s_"):
            self.kind = "salu"
            if n.startswith(("s_cmp", "s_cbranch", "s_branch", "s_waitcnt", "s_barrier", "s_sleep", "s_setprio",
                             "s_endpgm", "s_bitcmp")):
                for x in R:
                    self.rd |= x
            else:
                if R:
                    self.wr = R[0]
                for x in R[1:]:
                    self.rd |= x
                if "saveexec" in n:
                    self.wr |= {("exec", 0)}
        else:
            raise ValueError("unknown instruction: " + text)


def need(p, c):
    w = 0
    valu_p = p.kind in ("valu", "trans", "dpp")
    valu_c = c.kind in ("valu", "trans", "dpp")
    vw = {r for r in p.wr if r[0] in "va"}
    sw = {r for r in p.wr if r[0] in ("s", "vcc")}
    if valu_p:
        if c.kind == "mfma" and vw & c.rd:
            w = max(w, 2)
        if c.kind == "mfma" and ("exec", 0) in p.wr:
            w = max(w, 4)
        if c.kind == "dpp" and vw & c.rd:
            w = max(w, 2)
        if c.kind == "dpp" and ("exec", 0) in p.wr:
            w = max(w, 5)
        if c.name.startswith("v_permlane") and vw & c.rd:
            w = max(w, 2)
        if c.name.startswith(("v_readlane", "v_readfirstlane")) and vw & c.rd:
            w = max(w, 1)
        if c.name.startswith(("v_readlane", "v_readfirstlane", "v_writelane", "v_permlane")) and ("exec", 0) in p.wr:
            w = max(w, 4)
        if p.kind == "trans" and valu_c and c.kind != "trans" and vw & c.rd:
            w = max(w, 1)
        if p.kind == "trans" and c.kind == "trans" and vw & c.rd:
            w = max(w, 1)
        if ("sdwa" in p.name or "op_sel" in p.text and not p.name.startswith("v_pk")) and valu_c and vw & (c.rd | c.wr):
            w = max(w, 1)
        if sw:
            if c.kind == "vmem" and sw & c.rd:
                w = max(w, 5)
            if valu_c and sw & c.rd:
                w = max(w, 4 if c.name.startswith(("v_readlane", "v_writelane")) else 2)
            if c.kind == "salu" and sw & c.rd:
                w = max(w, 1)
            if c.name.startswith("s_cbranch_vcc") and ("vcc", 0) in sw:
                w = max(w, 1)
    if p.kind == "mfma":
        d = p.wr
        big = p.passes == 8
        if c.kind == "mfma":
            if d & c.ab:
                w = max(w, 12 if big else 8)
            if d & c.srcc:
                if not (d == c.srcc and p.passes == c.passes):
                    w = max(w, 10 if big else 6)
            elif d & c.wr:
                w = max(w, 12 if big else 8)
        elif c.kind in ("valu", "trans", "dpp", "ds", "vmem"):
            if d & (c.rd | c.wr):
                w = max(w, 12 if big else 8)
        if valu_c and p.srcc & c.wr:
            w = max(w, 7 if big else 3)
    if p.kind == "salu" and ("m0", 0) in p.wr and ("m0", 0) in c.rd and c.kind in ("vmem", "ds"):
        w = max(w, 1)
    if p.kind == "vmem" and p.stdata and (p.stdata & c.wr):
        w = max(w, 2)
    return w


class Asm:
    def __init__(self):
        self.lines = []

    def __call__(self, s):
        for ln in s.split("\n"):
            if ln.strip():
                self.lines.append(ln.strip())

    def label(self, name):
        self.lines.append(name + ":")

    def finish(self, report=False):
        out = []
        hist = []
        pos = 0
        added = 0
        for ln in self.lines:
            ins = Ins(ln)
            if ins.kind in ("label", "dir"):
                out.append(ln)
                continue
            req = 0
            for p, ppos in hist[-24:]:
                w = need(p, ins)
                if w:
                    have = pos - ppos
                    req = max(req, w - have)
            if req > 0:
                out.append(f"s_nop {req - 1}")
                pos += req
                added += req
            out.append(ln)
            pos += ins.states
            hist.append((ins, pos))
        if report:
            print("wait states inserted:", added)
        return out


class Regs:
    def __init__(self, lo, hi):
        self.free_ = [True] * hi
        for i in range(lo):
            self.free_[i] = False
        self.hi = hi
        self.peak = lo

    def alloc(self, n=1, align=None):
        align = align or (2 if n > 1 else 1)
        a = 0
        while a + n <= self.hi:
            if a % align == 0 and all(self.free_[a:a + n]):
                for i in range(a, a + n):
                    self.free_[i] = False
                self.peak = max(self.peak, a + n)
                return a
            a += 1
        raise RuntimeError(f"out of VGPRs allocating {n}")

    def free(self, a, n=1):
        for i in range(a, a + n):
            assert not self.free_[i], i
            self.free_[i] = True

    def snapshot(self):
        return list(self.free_)

    def restore(self, s):
        self.free_ = list(s)
```

```python
import sys, struct
from asmlib import Asm, Regs, vr, sr

KNAME = "concat_heads__grouped_kv_mqa__ssm_conv_s4__prompt_kernel"


def fbits(x):
    return "0x%08x" % struct.unpack("<I", struct.pack("<f", x))[0]


LOG2E = 1.4426950408889634
QSCALE = 0.25 * LOG2E
INV2PI = 0.15915494309189535

WS_FLAG1 = 4096
WS_FLAG2 = 32768
WS_KV = 65536
WS_O = 262144
WS_DBG = 4 << 20
WS_SIZE = 16 << 20

XT = 0
XROW = 1040
WQ = 66560
WKV = 132096
QX = 148480
KRED = WKV
RING = 0
TILE = 2064
CHUNK = 8 * TILE
KC = 33024 + 8
KCOPY = 4160
KCH = 4 * KCOPY
UR = 66320
UCH = 7600
YP = 81536
YW = 9216
WO = 98048
OS = 0
PX = 65536
OT = 65536
LDS_SIZE = 163840

sW, sQG, sHG, sD0, sNONCE = 3, 4, 5, 6, 7
SRD_WS, SRD_X, SRD_WQ, SRD_WKV, SRD_WO, SRD_U, SRD_OUT = 8, 12, 52, 56, 60, 64, 68
pX, pWQ, pWK, pWV, pWO, pU, pARE, pAIM = 16, 18, 20, 22, 24, 26, 28, 30
pBRE, pBIM, pCRE, pCIM, pLDT, pDSK, pOUT, pDBG, pWS = 32, 34, 36, 38, 40, 42, 44, 46, 48
sT0, sT1, sT2, sT3, sT4, sT5 = 72, 73, 74, 75, 76, 77
sEX = 78
sLDT, sDSK = 80, 81
sCNT = 82
sKH = 83
STAMP0 = 84


def generate(prof=False, dump=None, opts=None):
    opts = opts or {}
    A = Asm()
    R = Regs(1, 256)
    nstamp = [0]

    def stamp(name):
        if prof:
            n = nstamp[0]
            assert n < 9
            A(f"s_memrealtime {sr(STAMP0 + 2 * n, 2)}")
            nstamp[0] += 1

    def srd(d, p, n):
        A(f"s_mov_b32 s{d}, s{p}\ns_mov_b32 s{d + 1}, s{p + 1}\ns_mov_b32 s{d + 2}, {n}\ns_mov_b32 s{d + 3}, 0x00020000")

    def dma(srdreg, voff, soff, imm=0, fl=""):
        o = f" offset:{imm}" if imm else ""
        A(f"buffer_load_dwordx4 v{voff}, {sr(srdreg, 4)}, {soff} offen{o}{fl} lds")

    def dump_regs(tag, regs, n):
        if dump != tag:
            return
        t = R.alloc()
        A(f"s_lshl_b32 s{sT0}, s2, 9\nv_add_u32 v{t}, s{sT0}, v0\nv_mul_u32_u24 v{t}, {4 * n}, v{t}")
        A(f"s_mov_b32 s{sT0}, {WS_DBG}\ns_nop 15")
        for i in range(n):
            A(f"buffer_store_dword v{regs + i}, v{t}, {sr(SRD_WS, 4)}, s{sT0} offen offset:{4 * i}")
        A("s_waitcnt vmcnt(0)")
        R.free(t)

    def dump_lds(tag, base, nbytes):
        if dump != tag:
            return
        t = R.alloc()
        d = R.alloc(4)
        A("s_waitcnt vmcnt(0) lgkmcnt(0)\ns_barrier")
        A(f"v_lshlrev_b32 v{t}, 3, v0")
        A(f"s_mul_i32 s{sT0}, s2, {(nbytes + 4095) // 4096 * 4096}\ns_add_u32 s{sT0}, s{sT0}, {WS_DBG}")
        for off in range(0, nbytes, 4096):
            A(f"v_add_u32 v{d + 2}, {base + off}, v{t}\nds_read_b64 {vr(d, 2)}, v{d + 2}\ns_waitcnt lgkmcnt(0)")
            A(f"buffer_store_dwordx2 {vr(d, 2)}, v{t}, {sr(SRD_WS, 4)}, s{sT0} offen")
            A(f"s_add_u32 s{sT0}, s{sT0}, 4096\ns_waitcnt vmcnt(0)")
        A("s_barrier")
        R.free(t)
        R.free(d, 4)

    A("s_cmp_ge_u32 s2, 256\ns_cbranch_scc1 L_end")
    stamp("entry")
    A(f"s_load_dwordx16 s[16:31], s[0:1], 0\ns_load_dwordx16 s[32:47], s[0:1], 64\ns_load_dwordx2 s[48:49], s[0:1], 128")
    vL, vL31, vH, vX16, vWOFF = (R.alloc() for _ in range(5))
    t0, t1, t2, t3 = (R.alloc() for _ in range(4))
    A(f"v_lshrrev_b32 v{t0}, 6, v0\nv_and_b32 v{vL}, 63, v0")
    A(f"v_readfirstlane_b32 s{sW}, v{t0}")
    A(f"v_and_b32 v{vL31}, 31, v0\nv_bfe_u32 v{vH}, v0, 5, 1\nv_lshlrev_b32 v{vX16}, 4, v{vL}")
    A(f"v_lshrrev_b32 v{t0}, 3, v{vL}\nv_bfe_u32 v{t1}, v{vL}, 4, 1\nv_lshlrev_b32 v{t1}, 2, v{t1}")
    A(f"v_and_b32 v{t2}, 7, v{vL}\nv_xor_b32 v{t2}, v{t2}, v{t1}\nv_lshlrev_b32 v{t2}, 4, v{t2}")
    A(f"v_lshl_add_u32 v{vWOFF}, v{t0}, 10, v{t2}")
    A(f"s_and_b32 s{sT0}, s2, 7\ns_lshr_b32 s{sT1}, s2, 3\ns_and_b32 s{sHG}, s{sT1}, 7")
    A(f"s_lshr_b32 s{sT2}, s{sT1}, 3\ns_lshl_b32 s{sQG}, s{sT0}, 2\ns_add_u32 s{sQG}, s{sQG}, s{sT2}")
    A(f"s_lshl_b32 s{sD0}, s{sT0}, 6\ns_lshl_b32 s{sT1}, s{sT1}, 1\ns_add_u32 s{sD0}, s{sD0}, s{sT1}")
    A(f"s_lshr_b32 s{sKH}, s{sW}, 2")
    A(f"s_getpc_b64 {sr(sEX, 2)}")
    A("L_pc:")
    A(f"v_subrev_u32 v{t0}, 256, v0\nv_lshlrev_b32 v{t0}, 7, v{t0}")
    A(f"s_mov_b32 s{sT0}, L_codeend-L_pc-4\nv_cmp_gt_u32 vcc, s{sT0}, v{t0}")
    A(f"s_and_saveexec_b64 {sr(sT2, 2)}, vcc\ns_cbranch_execz L_nopf")
    A(f"global_load_dword v{t3}, v{t0}, {sr(sEX, 2)}")
    A("L_nopf:")
    A(f"s_mov_b64 exec, {sr(sT2, 2)}")
    A("s_waitcnt lgkmcnt(0)")
    srd(SRD_X, pX, 2097152)
    A(f"s_bitcmp1_b32 s{sHG}, 0\ns_cselect_b32 s{SRD_WKV}, s{pWV}, s{pWK}\ns_cselect_b32 s{SRD_WKV + 1}, s{pWV + 1}, s{pWK + 1}")
    A(f"s_mov_b32 s{SRD_WKV + 2}, 16384\ns_mov_b32 s{SRD_WKV + 3}, 0x00020000")
    srd(SRD_WQ, pWQ, 524288)
    A(f"s_lshl_b32 s{sT0}, s{sD0}, 1")
    A(f"s_load_dword s{sNONCE}, {sr(pWS, 2)}, 0\ns_load_dword s{sLDT}, {sr(pLDT, 2)}, s{sT0}\ns_load_dword s{sDSK}, {sr(pDSK, 2)}, s{sT0}")

    prm = R.alloc(6)
    A(f"s_cmp_lt_u32 s{sW}, 4\ns_cbranch_scc1 L_noprm")
    A(f"s_sub_u32 s{sT1}, s{sW}, 4\ns_lshl_b32 s{sT1}, s{sT1}, 7\ns_lshl_b32 s{sT0}, s{sD0}, 8\ns_add_u32 s{sT0}, s{sT0}, s{sT1}")
    A(f"v_lshl_add_u32 v{t0}, v{vL}, 1, s{sT0}")
    for i, p in enumerate((pARE, pAIM, pBRE, pBIM, pCRE, pCIM)):
        A(f"global_load_ushort v{prm + i}, v{t0}, {sr(p, 2)}")
    A("L_noprm:")

    sROW0 = sT5
    A(f"s_lshr_b32 s{sROW0}, s{sHG}, 1\ns_lshl_b32 s{sROW0}, s{sROW0}, 4")
    A(f"s_lshl_b32 s{sT0}, s{sW}, 1\ns_add_u32 s{sT0}, s{sT0}, s{sROW0}")
    A(f"s_mul_i32 s{sT1}, s{sT0}, {XROW}\ns_mov_b32 m0, s{sT1}")
    A(f"s_lshl_b32 s{sT2}, s{sQG}, 6\ns_add_u32 s{sT2}, s{sT2}, s{sT0}\ns_lshl_b32 s{sT2}, s{sT2}, 10")
    dma(SRD_X, vX16, f"s{sT2}")
    A(f"s_add_u32 s{sT1}, s{sT1}, {XROW}\ns_mov_b32 m0, s{sT1}\ns_add_u32 s{sT2}, s{sT2}, 1024")
    dma(SRD_X, vX16, f"s{sT2}")
    A(f"s_lshl_b32 s{sT2}, s{sW}, 11\ns_add_u32 s{sT1}, s{sT2}, {WKV}\ns_mov_b32 m0, s{sT1}")
    dma(SRD_WKV, vX16, f"s{sT2}")
    dma(SRD_WKV, vX16, f"s{sT2}", 1024)
    srd(SRD_WS, pWS, WS_SIZE)
    srd(SRD_WO, pWO, 524288)
    srd(SRD_U, pU, 2097152)
    srd(SRD_OUT, pOUT, 4194304)
    A(f"s_cmp_eq_u32 s{sW}, 0\ns_cbranch_scc1 L_st1_none\ns_cmp_eq_u32 s{sW}, 7\ns_cbranch_scc1 L_st1_wq")
    A(f"s_lshl_b32 s{sT0}, s{sW}, 3\ns_add_u32 s{sT0}, s{sT0}, s{sROW0}\ns_add_u32 s{sT0}, s{sT0}, 8\ns_and_b32 s{sT0}, s{sT0}, 63")
    A(f"s_mul_i32 s{sT1}, s{sT0}, {XROW}")
    A(f"s_lshl_b32 s{sT2}, s{sQG}, 6\ns_add_u32 s{sT2}, s{sT2}, s{sT0}\ns_lshl_b32 s{sT2}, s{sT2}, 10")
    for i in range(8):
        A(f"s_mov_b32 m0, s{sT1}\ns_add_u32 s{sT1}, s{sT1}, {XROW}")
        dma(SRD_X, vX16, f"s{sT2}")
        A(f"s_add_u32 s{sT2}, s{sT2}, 1024")
    A("s_waitcnt vmcnt(8)\ns_branch L_st1_done")
    A("L_st1_wq:")
    A(f"s_mov_b32 s{sT1}, {WQ}\ns_lshl_b32 s{sT2}, s{sHG}, 7")
    for i in range(8):
        A(f"s_mov_b32 m0, s{sT1}\ns_add_u32 s{sT1}, s{sT1}, 1024")
        dma(SRD_WQ, vWOFF, f"s{sT2}")
        A(f"s_add_u32 s{sT2}, s{sT2}, 8192")
    A("s_waitcnt vmcnt(8)\ns_branch L_st1_done")
    A("L_st1_none:")
    A("s_waitcnt vmcnt(0)")
    A("L_st1_done:")
    stamp("crit landed")
    A("s_barrier")
    A(f"s_waitcnt lgkmcnt(0)\ns_add_u32 s{sNONCE}, s{sNONCE}, 0x9e3779b9")
    A(f"s_cmp_eq_u32 s{sW}, 0\ns_cbranch_scc1 L_kvproj")
    A(f"s_lshl_b32 s{sT1}, s{sW}, 13\ns_add_u32 s{sT1}, s{sT1}, {WQ}")
    A(f"s_lshl_b32 s{sT2}, s{sW}, 16\ns_lshl_b32 s{sT0}, s{sHG}, 7\ns_add_u32 s{sT2}, s{sT2}, s{sT0}")
    for i in range(8):
        A(f"s_mov_b32 m0, s{sT1}\ns_add_u32 s{sT1}, s{sT1}, 1024")
        dma(SRD_WQ, vWOFF, f"s{sT2}")
        A(f"s_add_u32 s{sT2}, s{sT2}, 8192")
    A(f"s_cmp_lt_u32 s{sW}, 4\ns_cbranch_scc1 L_b1")
    A("s_branch L_kgen")

    A("L_kvproj:")
    snap = R.snapshot()
    ax, aw, ast = R.alloc(), R.alloc(), R.alloc()
    xf = R.alloc(64)
    wf = R.alloc(64)
    acc = R.alloc(8)
    A(f"v_and_b32 v{t0}, 15, v{vL}\nv_lshrrev_b32 v{t1}, 4, v{vL}")
    A(f"v_add_u32 v{t2}, s{sROW0}, v{t0}\nv_mul_u32_u24 v{ax}, {XROW}, v{t2}\nv_lshl_add_u32 v{ax}, v{t1}, 4, v{ax}")
    A(f"v_lshlrev_b32 v{aw}, 8, v{t1}\nv_lshl_add_u32 v{aw}, v{t0}, 3, v{aw}\nv_add_u32 v{aw}, {WKV}, v{aw}")

    def kv_reads(ks):
        A(f"ds_read_b128 {vr(xf + 4 * ks, 4)}, v{ax} offset:{64 * ks}")
        A(f"ds_read_b64_tr_b16 {vr(wf + 4 * ks, 2)}, v{aw} offset:{1024 * ks}")
        A(f"ds_read_b64_tr_b16 {vr(wf + 4 * ks + 2, 2)}, v{aw} offset:{1024 * ks + 128}")

    for ks in range(4):
        kv_reads(ks)
    A(f"s_lshr_b32 s{sT0}, s{sHG}, 2\ns_lshl_b32 s{sT1}, s{sQG}, 1\ns_add_u32 s{sT0}, s{sT0}, s{sT1}\ns_lshl_b32 s{sT0}, s{sT0}, 11")
    A(f"s_add_u32 s{sT0}, s{sT0}, {WS_KV}\ns_bfe_u32 s{sT1}, s{sHG}, 0x10001")
    A(f"v_and_b32 v{t2}, 1, v{t1}\nv_lshrrev_b32 v{t3}, 1, v{t1}")
    A(f"s_bitcmp1_b32 s{sHG}, 0\ns_cbranch_scc1 L_vproj")
    for isv in (0, 1):
        if isv:
            A("L_vproj:")
            A(f"s_lshl_b32 s{sT1}, s{sT1}, 9\ns_add_u32 s{sT0}, s{sT0}, s{sT1}\ns_add_u32 s{sT0}, s{sT0}, 1024")
            A(f"v_lshlrev_b32 v{ast}, 8, v{t3}\nv_lshl_add_u32 v{ast}, v{t0}, 4, v{ast}\nv_lshl_add_u32 v{ast}, v{t2}, 3, v{ast}")
        else:
            A(f"s_lshl_b32 s{sT1}, s{sT1}, 8\ns_add_u32 s{sT0}, s{sT0}, s{sT1}")
            A(f"v_lshlrev_b32 v{ast}, 9, v{t2}\nv_lshl_add_u32 v{ast}, v{t0}, 4, v{ast}\nv_lshl_add_u32 v{ast}, v{t3}, 3, v{ast}")
        for ks in range(16):
            if ks + 4 < 16:
                kv_reads(ks + 4)
                A("s_waitcnt lgkmcnt(12)")
            else:
                A(f"s_waitcnt lgkmcnt({3 * (15 - ks)})")
            d = acc + 4 * (ks & 1)
            a_, b_ = (xf, wf) if isv else (wf, xf)
            c = "0" if ks < 2 else vr(d, 4)
            A(f"v_mfma_f32_16x16x32_bf16 {vr(d, 4)}, {vr(a_ + 4 * ks, 4)}, {vr(b_ + 4 * ks, 4)}, {c}")
        if not isv:
            A("s_branch L_kvfin")
    A("L_kvfin:")
    A("s_nop 7")
    A(f"v_pk_add_f32 {vr(acc, 2)}, {vr(acc, 2)}, {vr(acc + 4, 2)}\nv_pk_add_f32 {vr(acc + 2, 2)}, {vr(acc + 2, 2)}, {vr(acc + 6, 2)}")
    A(f"v_cvt_pk_bf16_f32 v{acc}, v{acc}, v{acc + 1}\nv_cvt_pk_bf16_f32 v{acc + 1}, v{acc + 2}, v{acc + 3}")
    A(f"buffer_store_dwordx2 {vr(acc, 2)}, v{ast}, {sr(SRD_WS, 4)}, s{sT0} offen sc1")
    A(f"s_lshl_b32 s{sT1}, s2, 6\ns_add_u32 s{sT1}, s{sT1}, {WS_FLAG1}")
    A(f"v_mov_b32 v{t0}, s{sNONCE}\nv_mov_b32 v{t1}, 0")
    A(f"s_mov_b64 {sr(sEX, 2)}, exec\ns_waitcnt vmcnt(0)\ns_mov_b64 exec, 1")
    A(f"buffer_store_dword v{t0}, v{t1}, {sr(SRD_WS, 4)}, s{sT1} offen sc1")
    A(f"s_mov_b64 exec, {sr(sEX, 2)}")
    A("s_branch L_b1_nowait")
    R.restore(snap)

    A("L_kgen:")
    DK = R.alloc(16)
    snap = R.snapshot()

    def cmul(d, x, y):
        A(f"v_pk_mul_f32 {vr(d, 2)}, {vr(x, 2)}, {vr(y, 2)} op_sel:[0,0] op_sel_hi:[1,0]")
        A(f"v_pk_fma_f32 {vr(d, 2)}, {vr(x, 2)}, {vr(y, 2)}, {vr(d, 2)} op_sel:[1,1,0] op_sel_hi:[0,1,1] neg_lo:[1,0,0]")

    C = lambda: R.alloc(2)
    vdt = R.alloc()
    A(f"s_bitcmp1_b32 s{sW}, 1\ns_cselect_b32 s{sT0}, 0, 16\ns_lshl_b32 s{sT0}, s{sLDT}, s{sT0}\ns_and_b32 s{sT0}, s{sT0}, 0xffff0000")
    A(f"v_mov_b32 v{vdt}, {fbits(LOG2E)}\nv_mul_f32 v{vdt}, s{sT0}, v{vdt}\nv_exp_f32 v{vdt}, v{vdt}")
    A(f"v_cvt_pk_bf16_f32 v{vdt}, v{vdt}, v{vdt}\nv_and_b32 v{vdt}, 0xffff0000, v{vdt}")
    for i in range(6):
        A(f"v_lshlrev_b32 v{prm + i}, 16, v{prm + i}")
    lam, cc = C(), C()
    for i in range(4):
        A(f"v_mul_f32 v{prm + i}, v{vdt}, v{prm + i}")
    A(f"v_mul_f32 v{lam}, {fbits(LOG2E)}, v{prm}\nv_mul_f32 v{lam + 1}, {fbits(INV2PI)}, v{prm + 1}")
    cmul(cc, prm + 4, prm + 2)
    z = {}
    tA, tB = C(), C()
    for n in (1, 8, 64, 256):
        z[n] = C()
        if n == 1:
            A(f"v_exp_f32 v{tA}, v{lam}\nv_fract_f32 v{tA + 1}, v{lam + 1}")
        else:
            A(f"v_mul_f32 v{tA}, {fbits(float(n))}, v{lam}\nv_mul_f32 v{tA + 1}, {fbits(float(n))}, v{lam + 1}")
            A(f"v_exp_f32 v{tA}, v{tA}\nv_fract_f32 v{tA + 1}, v{tA + 1}")
        A(f"v_cos_f32 v{tB}, v{tA + 1}\nv_sin_f32 v{tB + 1}, v{tA + 1}")
        A(f"v_pk_mul_f32 {vr(z[n], 2)}, {vr(tB, 2)}, {vr(tA, 2)} op_sel:[0,0] op_sel_hi:[1,0]")
    for n in (2, 16, 512, 4, 32):
        z[n] = C()
        cmul(z[n], z[n // 2], z[n // 2])
    z[768] = C()
    cmul(z[768], z[512], z[256])
    cz256, cz512, cz768 = C(), C(), C()
    cmul(cz256, cc, z[256])
    cmul(cz512, cc, z[512])
    cmul(cz768, cc, z[768])
    one1, one2, z1b, z4b, z8b, z64b, z256b = (C() for _ in range(7))
    for o in (one1, one2):
        A(f"v_mov_b32 v{o}, 1.0\nv_mov_b32 v{o + 1}, 0")
    for dst, n in ((z1b, 1), (z4b, 4), (z8b, 8), (z64b, 64), (z256b, 256)):
        A(f"v_pk_mov_b32 {vr(dst, 2)}, {vr(z[n], 2)}, {vr(z[n], 2)} op_sel:[0,1]")
    pairs = dict(A0=(cc, cz256), Ma=(z[1], one1), Mb=(z1b, z[2]), A8=(cz512, cz768), N=(z[512], z[768]),
                 Z4=(z[4], z4b), Z8=(z[8], z8b), Z256=(z[256], z256b), Z64=(z[64], z64b), E0=(one2, z[32]))
    for x, y in pairs.values():
        A(f"v_permlane32_swap_b32 v{x}, v{y}\nv_permlane32_swap_b32 v{x + 1}, v{y + 1}")
    sel = R.alloc(8)
    A(f"v_lshlrev_b32 v{t0}, 2, v{vH}\nv_sub_u32 v{t0}, v{vL31}, v{t0}")
    A(f"v_and_b32 v{t1}, 1, v{t0}\nv_lshlrev_b32 v{t1}, 4, v{t1}\nv_mov_b32 v{t2}, 0x3f80\nv_lshlrev_b32 v{t1}, v{t1}, v{t2}")
    A(f"v_lshrrev_b32 v{t0}, 1, v{t0}")
    for j, u in enumerate((0, 1, 4, 5, 8, 9, 12, 13)):
        A(f"v_cmp_eq_u32 vcc, {u}, v{t0}\nv_cndmask_b32 v{sel + j}, 0, v{t1}, vcc")
    ent = R.alloc(32)
    pk = R.alloc(16)
    Dre, Dim = R.alloc(16), R.alloc(16)
    opA, opB = R.alloc(16), R.alloc(16)
    for rnd in range(2):
        P = {k: v[rnd] for k, v in pairs.items()}
        for side in ("A", "B"):
            e = [ent + 2 * j for j in range(16)]
            if side == "B":
                e[0] = P["E0"]
                for j in range(1, 4):
                    cmul(e[j], e[j - 1], P["Z8"])
                for j in range(4, 16):
                    cmul(e[j], e[j - 4], P["Z64"])
            else:
                e[0], e[8] = P["A0"], P["A8"]
                order = [(1, 0, "Ma"), (9, 8, "Z4"), (11, 8, "N"), (2, 1, "Mb"), (10, 9, "Z4"), (12, 11, "Z8"),
                         (3, 2, "Mb"), (13, 11, "Z256"), (4, 3, "Ma"), (14, 13, "Z8"), (5, 4, "Ma"), (6, 5, "Mb"),
                         (7, 6, "Mb")]
                for j, s, m in order:
                    cmul(e[j], e[s], P[m])
                e[15] = e[14]
            neg = "-" if side == "A" else ""
            for j in range(8):
                A(f"v_cvt_pk_bf16_f32 v{pk + j}, v{e[2 * j]}, v{e[2 * j + 1]}")
                A(f"v_cvt_pk_bf16_f32 v{pk + 8 + j}, {neg}v{e[2 * j] + 1}, {neg}v{e[2 * j + 1] + 1}")
            for D, p in ((Dre, pk), (Dim, pk + 8)):
                A(f"v_mfma_f32_32x32x16_bf16 {vr(D, 16)}, {vr(p, 4)}, {vr(sel, 4)}, 0")
            for D, p in ((Dre, pk), (Dim, pk + 8)):
                A(f"v_mfma_f32_32x32x16_bf16 {vr(D, 16)}, {vr(p + 4, 4)}, {vr(sel + 4, 4)}, {vr(D, 16)}")
            op = opA if side == "A" else opB
            for pl, D in enumerate((Dre, Dim)):
                for j in range(8):
                    A(f"v_cvt_pk_bf16_f32 v{op + 8 * pl + j}, v{D + 2 * j}, v{D + 2 * j + 1}")
        for s in range(4):
            c = "0" if (rnd == 0 and s == 0) else vr(DK, 16)
            A(f"v_mfma_f32_32x32x16_bf16 {vr(DK, 16)}, {vr(opA + 4 * s, 4)}, {vr(opB + 4 * s, 4)}, {c}")
    R.restore(snap)
    A("s_nop 7\ns_nop 7")

    A("L_b1:")
    A("s_waitcnt vmcnt(0)")
    A("L_b1_nowait:")
    stamp("pre B1")
    A("s_barrier")
    Q = R.alloc(8)
    A(f"s_cmp_ge_u32 s{sW}, 4\ns_cbranch_scc1 L_aux1")
    snap = R.snapshot()
    aA, aB = R.alloc(), R.alloc()
    NB = 6
    fa, fb = R.alloc(4 * NB), R.alloc(4 * NB)
    acc = R.alloc(16)

    def tr_addr(dst, base, tile_s, hrow):
        A(f"v_bfe_u32 v{t0}, v{vL}, 2, 2\nv_lshl_add_u32 v{t1}, v{vH}, {hrow}, v{t0}\nv_lshlrev_b32 v{dst}, 7, v{t1}")
        A(f"v_bfe_u32 v{t1}, v{vL}, 4, 1\nv_lshlrev_b32 v{t1}, 1, v{t1}\nv_bfe_u32 v{t2}, v{vL}, 1, 1\nv_add_u32 v{t1}, v{t1}, v{t2}")
        A(f"v_lshrrev_b32 v{t0}, 1, v{t0}\nv_xor_b32 v{t0}, s{tile_s}, v{t0}\nv_lshl_add_u32 v{t1}, v{t0}, 2, v{t1}")
        A(f"v_lshl_add_u32 v{dst}, v{t1}, 4, v{dst}\nv_and_b32 v{t2}, 1, v{vL}\nv_lshl_add_u32 v{dst}, v{t2}, 3, v{dst}")
        A(f"v_add_u32 v{dst}, {base}, v{dst}")

    A(f"s_and_b32 s{sT0}, s{sW}, 1\ns_bfe_u32 s{sT1}, s{sW}, 0x10001\ns_lshl_b32 s{sT1}, s{sT1}, 5")
    tr_addr(aA, WQ, sT0, 3)
    A(f"v_add_u32 v{t0}, s{sT1}, v{vL31}\nv_mul_u32_u24 v{aB}, {XROW}, v{t0}\nv_lshl_add_u32 v{aB}, v{vH}, 4, v{aB}")

    def proj(rdA, rdB, nsteps=32):
        PF = NB - 2
        for ks in range(PF):
            rdA(ks)
            rdB(ks)
        for ks in range(nsteps):
            if ks + PF < nsteps:
                rdA(ks + PF)
                rdB(ks + PF)
                A(f"s_waitcnt lgkmcnt({3 * PF})")
            else:
                A(f"s_waitcnt lgkmcnt({3 * (nsteps - 1 - ks)})")
            c = "0" if ks == 0 else vr(acc, 16)
            A(f"v_mfma_f32_32x32x16_bf16 {vr(acc, 16)}, {vr(fa + 4 * (ks % NB), 4)}, {vr(fb + 4 * (ks % NB), 4)}, {c}")

    def qA(ks):
        d = fa + 4 * (ks % NB)
        A(f"ds_read_b64_tr_b16 {vr(d, 2)}, v{aA} offset:{2048 * ks}\nds_read_b64_tr_b16 {vr(d + 2, 2)}, v{aA} offset:{2048 * ks + 512}")

    def qB(ks):
        A(f"ds_read_b128 {vr(fb + 4 * (ks % NB), 4)}, v{aB} offset:{32 * ks}")

    proj(qA, qB)
    A(f"s_mov_b32 s{sT2}, {fbits(QSCALE)}")
    A(f"s_lshl_b32 s{sT0}, s{sW}, 11\ns_add_u32 s{sT0}, s{sT0}, {QX}\nv_add_u32 v{t0}, s{sT0}, v{vX16}")
    for i in range(16):
        A(f"v_mul_f32 v{acc + i}, s{sT2}, v{acc + i}")
    for j in range(8):
        A(f"v_cvt_pk_bf16_f32 v{Q + j}, v{acc + 2 * j}, v{acc + 2 * j + 1}")
    A(f"ds_write_b128 v{t0}, {vr(Q, 4)}\nds_write_b128 v{t0}, {vr(Q + 4, 4)} offset:1024")
    A("s_waitcnt lgkmcnt(0)\ns_branch L_b2")
    R.restore(snap)
    A("L_aux1:")
    A(f"s_bitcmp1_b32 s{sW}, 0\ns_cbranch_scc0 L_b2")
    A(f"s_bfe_u32 s{sT0}, s{sW}, 0x10001\ns_lshl_b32 s{sT0}, s{sT0}, 12\ns_add_u32 s{sT0}, s{sT0}, {KRED}\nv_add_u32 v{t0}, s{sT0}, v{vX16}")
    for a in range(4):
        A(f"ds_write_b128 v{t0}, {vr(DK + 4 * a, 4)} offset:{1024 * a}")
    A(f"s_waitcnt lgkmcnt(0)\ns_cmp_eq_u32 s{sW}, 7\ns_cbranch_scc0 L_b2")
    snap = R.snapshot()
    fl = R.alloc(4)
    A(f"v_lshlrev_b32 v{t0}, 6, v{vL}\ns_mov_b32 s{sCNT}, 400000")
    A(f"s_mov_b32 s{sT0}, {WS_FLAG1}\ns_mov_b32 s{sT1}, {WS_FLAG1 + 4096}\ns_mov_b32 s{sT2}, {WS_FLAG1 + 8192}\ns_mov_b32 s{sT3}, {WS_FLAG1 + 12288}")
    A("L_poll1:")
    for i in range(4):
        A(f"buffer_load_dword v{fl + i}, v{t0}, {sr(SRD_WS, 4)}, s{sT0 + i} offen sc1")
    A("s_waitcnt vmcnt(0)")
    A(f"v_xor_b32 v{fl}, s{sNONCE}, v{fl}\nv_xor_b32 v{fl + 1}, s{sNONCE}, v{fl + 1}\nv_xor_b32 v{fl + 2}, s{sNONCE}, v{fl + 2}\nv_xor_b32 v{fl + 3}, s{sNONCE}, v{fl + 3}")
    A(f"v_or3_b32 v{fl}, v{fl}, v{fl + 1}, v{fl + 2}\nv_or_b32 v{fl}, v{fl}, v{fl + 3}\nv_cmp_ne_u32 vcc, 0, v{fl}")
    A(f"s_nop 4\ns_cbranch_vccz L_b2\ns_sub_u32 s{sCNT}, s{sCNT}, 1\ns_cmp_lg_u32 s{sCNT}, 0\ns_cbranch_scc1 L_poll1")
    R.restore(snap)

    A("L_b2:")
    stamp("pre B2")
    A("s_barrier")
    A(f"s_or_b32 s{sT0}, s2, s{sW}\ns_cmp_eq_u32 s{sT0}, 0\ns_cbranch_scc0 L_noep")
    A(f"v_mov_b32 v{t0}, s{sNONCE}\nv_mov_b32 v{t1}, 0\ns_mov_b64 {sr(sEX, 2)}, exec\ns_mov_b64 exec, 1")
    A(f"buffer_store_dword v{t0}, v{t1}, {sr(SRD_WS, 4)}, 0 offen\ns_mov_b64 exec, {sr(sEX, 2)}\ns_waitcnt vmcnt(0)")
    A("L_noep:")
    sKVG, sKVL = 50, 51
    A(f"s_and_b32 s{sT0}, s{sW}, 3\ns_lshl_b32 s{sT1}, s{sKH}, 5\ns_add_u32 s{sT0}, s{sT0}, s{sT1}\ns_lshl_b32 s{sKVG}, s{sT0}, 11")
    A(f"s_add_u32 s{sKVG}, s{sKVG}, {WS_KV}\ns_mul_i32 s{sKVL}, s{sW}, {TILE}")

    def kv_dma(c):
        out = []
        if c & 1:
            out.append(f"s_add_u32 s{sT0}, s{sKVL}, {RING + CHUNK}\ns_mov_b32 m0, s{sT0}")
        else:
            out.append(f"s_mov_b32 m0, s{sKVL}")
        out.append(f"buffer_load_dwordx4 v{vX16}, {sr(SRD_WS, 4)}, s{sKVG} offen sc1 lds")
        out.append(f"buffer_load_dwordx4 v{vX16}, {sr(SRD_WS, 4)}, s{sKVG} offen offset:1024 sc1 lds\ns_add_u32 s{sKVG}, s{sKVG}, 8192")
        return out

    for c in (0, 1):
        for s in kv_dma(c):
            A(s)
    A(f"s_cmp_lt_u32 s{sW}, 4\ns_cbranch_scc1 L_haveq")
    A(f"s_and_b32 s{sT0}, s{sW}, 3\ns_lshl_b32 s{sT0}, s{sT0}, 11\ns_add_u32 s{sT0}, s{sT0}, {QX}\nv_add_u32 v{t0}, s{sT0}, v{vX16}")
    A(f"ds_read_b128 {vr(Q, 4)}, v{t0}\nds_read_b128 {vr(Q + 4, 4)}, v{t0} offset:1024")
    A("L_haveq:")
    snap = R.snapshot()
    on = R.alloc(4)
    A(f"v_mul_u32_u24 v{t0}, {TILE}, v{vL}\nv_add_u32 v{t0}, {RING + 2048}, v{t0}")
    for i in range(4):
        A(f"v_mov_b32 v{on + i}, 0x3f803f80")
    A(f"s_mov_b64 {sr(sEX, 2)}, exec\ns_mov_b64 exec, 0xffff\nds_write_b128 v{t0}, {vr(on, 4)}\ns_mov_b64 exec, {sr(sEX, 2)}")
    R.restore(snap)
    dump_regs("q", Q, 8)

    snap = R.snapshot()
    ug = R.alloc(4)
    A(f"s_lshl_b32 s{sT0}, s{sW}, 18\ns_lshl_b32 s{sT1}, s{sD0}, 1\ns_add_u32 s{sT0}, s{sT0}, s{sT1}\nv_lshlrev_b32 v{t0}, 10, v{vL}")
    for r_ in range(4):
        A(f"buffer_load_dword v{ug + r_}, v{t0}, {sr(SRD_U, 4)}, s{sT0} offen\ns_add_u32 s{sT0}, s{sT0}, 65536")
    zz = R.alloc(4)
    for i in range(4):
        A(f"v_mov_b32 v{zz + i}, 0")
    A(f"v_lshlrev_b32 v{t1}, 4, v0\nv_add_u32 v{t1}, {UR + 64 * 80}, v{t1}\nv_cmp_gt_u32 vcc, 155, v0")
    A(f"s_and_saveexec_b64 {sr(sEX, 2)}, vcc\nds_write_b128 v{t1}, {vr(zz, 4)}\nds_write_b128 v{t1}, {vr(zz, 4)} offset:{UCH}\ns_mov_b64 exec, {sr(sEX, 2)}")
    A(f"s_and_b32 s{sT0}, s{sW}, 5\ns_cmp_eq_u32 s{sT0}, 4\ns_cbranch_scc0 L_noexp")
    snap2 = R.snapshot()
    oth = R.alloc(16)
    ck = R.alloc(16)
    A(f"s_bfe_u32 s{sT1}, s{sW}, 0x10001\ns_lshl_b32 s{sT0}, s{sT1}, 12\ns_add_u32 s{sT0}, s{sT0}, {KRED}\nv_add_u32 v{t0}, s{sT0}, v{vX16}")
    for a in range(4):
        A(f"ds_read_b128 {vr(oth + 4 * a, 4)}, v{t0} offset:{1024 * a}")
    A(f"s_mul_i32 s{sT1}, s{sT1}, {KCH}\ns_add_u32 s{sT1}, s{sT1}, {KC}")
    A(f"v_lshrrev_b32 v{t1}, 3, v{vL31}\nv_mul_u32_u24 v{t1}, {KCOPY}, v{t1}\nv_and_b32 v{t2}, 7, v{vL}\nv_lshl_add_u32 v{t1}, v{t2}, 3, v{t1}")
    A(f"v_add_u32 v{t1}, s{sT1}, v{t1}\nds_write_b64 v{t1}, {vr(zz, 2)}")
    A("s_waitcnt lgkmcnt(1)")
    for i in range(0, 16, 2):
        A(f"v_pk_add_f32 {vr(DK + i, 2)}, {vr(DK + i, 2)}, {vr(oth + i, 2)}")
    cv = lambda d, a, b: A(f"v_cvt_pk_bf16_f32 v{d}, v{DK + a}, v{DK + b}")
    for j in range(4):
        cv(ck + j, 2 * j, 2 * j + 1)
    cv(ck + 4, 8, 8), cv(ck + 5, 8, 9), cv(ck + 6, 9, 9), cv(ck + 7, 10, 10)
    A(f"v_and_b32 v{t2}, 1, v{vL}\nv_cmp_eq_u32 vcc, 0, v{t2}")
    for base, a in ((ck + 8, 11), (ck + 12, 13)):
        A(f"v_cndmask_b32 v{DK + 15}, v{DK + a + 1}, v{DK + a}, vcc")
        cv(base, a, a), cv(base + 1, a, a), cv(base + 2, 15, a + 1), cv(base + 3, a + 1, a + 1)
    A(f"s_add_u32 s{sT2}, s{sT1}, {3 * KCOPY + 56}")
    A(f"v_lshlrev_b32 v{t1}, 4, v{vL31}\nv_add_u32 v{t1}, s{sT2}, v{t1}")
    A(f"v_lshl_add_u32 v{t2}, v{vH}, 9, v{t1}\nv_lshl_add_u32 v{t3}, v{vH}, 10, v{t1}")
    A(f"ds_write_b128 v{t2}, {vr(ck, 4)}\nds_write_b128 v{t2}, {vr(ck + 4, 4)} offset:1024")
    A(f"ds_write_b128 v{t3}, {vr(ck + 8, 4)} offset:2048\nds_write_b128 v{t3}, {vr(ck + 12, 4)} offset:2560")
    A(f"s_add_u32 s{sT2}, s{sT1}, 52\nv_add_u32 v{t1}, s{sT2}, v{vX16}")
    A(f"v_add_u32 v{t2}, {KCOPY}, v{t1}\ns_waitcnt lgkmcnt(0)")
    for ps in range(4):
        A(f"ds_read_b32 v{ck + ps}, v{t1} offset:{3 * KCOPY + 1024 * ps}")
        A(f"ds_read_b128 {vr(oth + 4 * ps, 4)}, v{t1} offset:{3 * KCOPY + 1024 * ps + 4}")
    A("s_waitcnt lgkmcnt(0)")
    for ps in range(4):
        r_ = oth + 4 * ps
        tt = DK + 4 * ps
        A(f"v_alignbit_b32 v{tt}, v{r_}, v{ck + ps}, 16")
        for k in range(1, 4):
            A(f"v_alignbit_b32 v{tt + k}, v{r_ + k}, v{r_ + k - 1}, 16")
        A(f"ds_write_b128 v{t1}, {vr(tt, 4)} offset:{2 * KCOPY + 1024 * ps + 4}")
        if ps:
            A(f"v_add_u32 v{t3}, {1024 * ps}, v{t2}\nv_add_u32 v{t0}, {1024 * ps}, v{t1}")
            b1, b0 = t3, t0
        else:
            b1, b0 = t2, t1
        A(f"ds_write2_b32 v{b1}, v{r_}, v{r_ + 1} offset0:2 offset1:3\nds_write2_b32 v{b1}, v{r_ + 2}, v{r_ + 3} offset0:4 offset1:5")
        A(f"ds_write2_b32 v{b0}, v{tt}, v{tt + 1} offset0:2 offset1:3\nds_write2_b32 v{b0}, v{tt + 2}, v{tt + 3} offset0:4 offset1:5")
    R.restore(snap2)
    A("L_noexp:")
    A(f"s_lshl_b32 s{sT0}, s{sW}, 8\ns_sub_u32 s{sT0}, {2047 - 192}, s{sT0}\nv_sub_u32 v{t0}, s{sT0}, v{vL}")
    A(f"v_lshrrev_b32 v{t1}, 5, v{t0}\nv_mul_u32_u24 v{t1}, 80, v{t1}\nv_and_b32 v{t0}, 31, v{t0}\nv_lshl_add_u32 v{t0}, v{t0}, 1, v{t1}")
    A(f"v_add_u32 v{t0}, {UR}, v{t0}\ns_waitcnt vmcnt(0)")
    for r_ in range(4):
        A(f"ds_write_b16 v{t0}, v{ug + r_} offset:{160 * (3 - r_)}\nds_write_b16_d16_hi v{t0}, v{ug + r_} offset:{160 * (3 - r_) + UCH}")
    A("s_waitcnt lgkmcnt(0)\ns_barrier")
    dump_lds("kc", KC - 8, 2 * KCH + 16)
    dump_lds("ur", UR, 2 * UCH)
    aA, aB = R.alloc(), R.alloc()
    y0, y1 = R.alloc(16), R.alloc(16)
    cf = R.alloc(48)
    A(f"s_and_b32 s{sT0}, s{sW}, 3\ns_mul_i32 s{sT1}, s{sKH}, {KCH}\ns_lshl_b32 s{sT2}, s{sT0}, 9\ns_add_u32 s{sT1}, s{sT1}, s{sT2}\ns_add_u32 s{sT1}, s{sT1}, {KC}")
    A(f"v_and_b32 v{t0}, 3, v{vL}\nv_mul_u32_u24 v{aA}, {KCOPY}, v{t0}\nv_and_b32 v{t0}, 28, v{vL}\nv_lshl_add_u32 v{aA}, v{t0}, 1, v{aA}")
    A(f"v_lshl_add_u32 v{aA}, v{vH}, 4, v{aA}\nv_add_u32 v{aA}, s{sT1}, v{aA}")
    A(f"s_mul_i32 s{sT1}, s{sKH}, {UCH}\ns_mul_i32 s{sT2}, s{sT0}, 640\ns_add_u32 s{sT1}, s{sT1}, s{sT2}\ns_add_u32 s{sT1}, s{sT1}, {UR + 31 * 80}")
    A(f"v_mul_u32_u24 v{t0}, 80, v{vL31}\nv_sub_u32 v{aB}, s{sT1}, v{t0}\nv_lshl_add_u32 v{aB}, v{vH}, 4, v{aB}")

    def conv_reads(st):
        dd, kp = st >> 1, st & 1
        b = cf + 16 * (st % 3)
        oa, ob = 64 * dd + 32 * kp, 80 * dd + 32 * kp
        A(f"ds_read_b64 {vr(b, 2)}, v{aA} offset:{oa}\nds_read_b64 {vr(b + 2, 2)}, v{aA} offset:{oa + 8}")
        A(f"ds_read_b128 {vr(b + 8, 4)}, v{aB} offset:{ob + 2560}\nds_read_b128 {vr(b + 12, 4)}, v{aB} offset:{ob}")
        A(f"ds_read_b64 {vr(b + 4, 2)}, v{aA} offset:{oa + 2048}\nds_read_b64 {vr(b + 6, 2)}, v{aA} offset:{oa + 2056}")

    conv_reads(0)
    conv_reads(1)
    for st in range(16):
        b = cf + 16 * (st % 3)
        if st + 1 < 16:
            A("s_waitcnt lgkmcnt(6)")
        else:
            A("s_waitcnt lgkmcnt(0)")
        c0 = "0" if st == 0 else vr(y0, 16)
        c1 = "0" if st == 0 else vr(y1, 16)
        A(f"v_mfma_f32_32x32x16_bf16 {vr(y1, 16)}, {vr(b, 4)}, {vr(b + 12, 4)}, {c1}")
        A(f"v_mfma_f32_32x32x16_bf16 {vr(y0, 16)}, {vr(b, 4)}, {vr(b + 8, 4)}, {c0}")
        if st + 2 < 16:
            conv_reads(st + 2)
        A(f"v_mfma_f32_32x32x16_bf16 {vr(y1, 16)}, {vr(b + 4, 4)}, {vr(b + 8, 4)}, {vr(y1, 16)}")
    A(f"s_mul_i32 s{sT0}, s{sW}, {YW}\ns_add_u32 s{sT0}, s{sT0}, {YP}")
    A(f"v_mul_u32_u24 v{t0}, 144, v{vL31}\nv_lshl_add_u32 v{t0}, v{vH}, 4, v{t0}\nv_add_u32 v{t0}, s{sT0}, v{t0}")
    for e, y in enumerate((y0, y1)):
        for a in range(4):
            A(f"ds_write_b128 v{t0}, {vr(y + 4 * a, 4)} offset:{32 * 144 * e + 32 * a}")
    A(f"v_lshrrev_b32 v{t1}, 3, v0\nv_and_b32 v{t2}, 7, v0")
    A(f"v_mul_u32_u24 v{t0}, 144, v{t1}\nv_lshl_add_u32 v{t0}, v{t2}, 4, v{t0}\nv_add_u32 v{t0}, {YP}, v{t0}")
    A(f"v_mul_u32_u24 v{t1}, 80, v{t1}\nv_lshl_add_u32 v{t1}, v{t2}, 3, v{t1}\nv_sub_u32 v{t1}, {UR + 63 * 80 + 56}, v{t1}")
    A("s_waitcnt lgkmcnt(0)\ns_barrier")
    A(f"v_add_u32 v{t2}, {4 * YW}, v{t0}")
    for ch in range(2):
        for om in range(4):
            A(f"ds_read_b128 {vr(cf + 16 * ch + 4 * om, 4)}, v{t2 if ch else t0} offset:{om * YW}")
    uu = cf + 32
    A(f"ds_read_b64 {vr(uu, 2)}, v{t1}\nds_read_b64 {vr(uu + 2, 2)}, v{t1} offset:{UCH}")
    A(f"s_lshl_b32 s{sT0}, s{sDSK}, 16\ns_and_b32 s{sT1}, s{sDSK}, 0xffff0000")
    A(f"s_lshl_b32 s{sT2}, s{sD0}, 1\ns_add_u32 s{sT2}, s{sT2}, 1024\nv_lshlrev_b32 v{t3}, 13, v0")
    A("s_waitcnt lgkmcnt(0)")
    for ch in range(2):
        b = cf + 16 * ch
        A(f"v_pk_add_f32 {vr(b, 2)}, {vr(b, 2)}, {vr(b + 4, 2)}\nv_pk_add_f32 {vr(b + 2, 2)}, {vr(b + 2, 2)}, {vr(b + 6, 2)}")
        A(f"v_pk_add_f32 {vr(b + 8, 2)}, {vr(b + 8, 2)}, {vr(b + 12, 2)}\nv_pk_add_f32 {vr(b + 10, 2)}, {vr(b + 10, 2)}, {vr(b + 14, 2)}")
        A(f"v_pk_add_f32 {vr(b, 2)}, {vr(b, 2)}, {vr(b + 8, 2)}\nv_pk_add_f32 {vr(b + 2, 2)}, {vr(b + 2, 2)}, {vr(b + 10, 2)}")
        u0, u1 = uu + 2 * ch, uu + 2 * ch + 1
        A(f"v_and_b32 v{b + 4}, 0xffff0000, v{u1}\nv_lshlrev_b32 v{b + 5}, 16, v{u1}\nv_and_b32 v{b + 6}, 0xffff0000, v{u0}\nv_lshlrev_b32 v{b + 7}, 16, v{u0}")
        for k in range(4):
            A(f"v_fmac_f32 v{b + k}, s{sT0 + ch}, v{b + 4 + k}")
    for k in range(4):
        A(f"v_cvt_pk_bf16_f32 v{uu + 4 + k}, v{cf + k}, v{cf + 16 + k}")
    for k in range(4):
        A(f"buffer_store_dword v{uu + 4 + k}, v{t3}, {sr(SRD_OUT, 4)}, s{sT2} offen\ns_add_u32 s{sT2}, s{sT2}, 2048")
    A("s_barrier")
    R.restore(snap)
    R.free(DK, 16)
    R.free(prm, 6)
    A(f"s_lshl_b32 s{sT1}, s{sW}, 13\ns_add_u32 s{sT1}, s{sT1}, {WO}")
    A(f"s_lshl_b32 s{sT2}, s{sW}, 16\ns_lshl_b32 s{sT0}, s{sHG}, 7\ns_add_u32 s{sT2}, s{sT2}, s{sT0}")
    for i in range(8):
        A(f"s_mov_b32 m0, s{sT1}\ns_add_u32 s{sT1}, s{sT1}, 1024")
        dma(SRD_WO, vWOFF, f"s{sT2}")
        A(f"s_add_u32 s{sT2}, s{sT2}, 8192")
    stamp("ssm done")

    Sa, Sb = R.alloc(16), R.alloc(16)
    O0, O1 = R.alloc(16), R.alloc(16)
    KV = R.alloc(24)
    IDX, aK, aV0, aV1 = (R.alloc() for _ in range(4))
    Q0, Q1 = Q, Q + 4
    A(f"s_mul_i32 s{sT0}, s{sKH}, {4 * TILE}\ns_add_u32 s{sT0}, s{sT0}, {RING}\nv_add_u32 v{aK}, s{sT0}, v{vX16}")
    A(f"v_lshlrev_b32 v{t0}, 4, v{vL31}\nv_lshl_add_u32 v{t0}, v{vH}, 8, v{t0}\nv_add_u32 v{t1}, 1024, v{t0}\nv_add_u32 v{t2}, 1536, v{t0}")
    A(f"v_mov_b32 v{t3}, 2048\nv_cmp_gt_u32 vcc, 16, v{vL31}\nv_cndmask_b32 v{t1}, v{t3}, v{t1}, vcc\nv_cndmask_b32 v{t2}, v{t3}, v{t2}, vcc")
    A(f"v_add_u32 v{aV0}, s{sT0}, v{t1}\nv_add_u32 v{aV1}, s{sT0}, v{t2}\nv_mov_b32 v{IDX}, 0xdddd")
    for i in range(16):
        A(f"v_mov_b32 v{O0 + i}, 0\nv_mov_b32 v{O1 + i}, 0")
    K = lambda u: KV + 12 * (u % 2)
    V0 = lambda u: KV + 12 * (u % 2) + 4
    V1 = lambda u: KV + 12 * (u % 2) + 8
    toff = lambda u: ((u >> 2) & 1) * CHUNK + (u & 3) * TILE
    rdK = lambda u: f"ds_read_b128 {vr(K(u), 4)}, v{aK} offset:{toff(u)}"
    rdV0 = lambda u: f"ds_read_b128 {vr(V0(u), 4)}, v{aV0} offset:{toff(u)}"
    rdV1 = lambda u: f"ds_read_b128 {vr(V1(u), 4)}, v{aV1} offset:{toff(u)}"
    mf = lambda d, a, b: f"v_mfma_f32_32x32x16_bf16 {vr(d, 16)}, {vr(a, 4)}, {vr(b, 4)}, 0"
    sm = lambda d, a, b: f"v_smfmac_f32_32x32x32_bf16 {vr(d, 16)}, {vr(a, 4)}, {vr(b, 8)}, v{IDX}"
    A("s_waitcnt vmcnt(0) lgkmcnt(0)\ns_barrier")
    A(rdK(0)), A(rdV0(0)), A(rdV1(0))
    A("s_waitcnt lgkmcnt(0)")
    A(mf(Sa, K(0), Q0))
    pos = opts.get("pos", (2, 5, 11))
    NT = 32

    def phase(cur, oth_, m0, m1, m2, pre, post):
        for i in range(16):
            for s in pre.get(i, []):
                A(s)
            for p, m in zip(pos, (m0, m1, m2)):
                if i == p and m:
                    A(m)
            for s in post.get(i, []):
                A(s)
            A(f"v_exp_f32 v{cur + i}, v{cur + i}")

    for n in range(NT):
        preA, postA, preB, postB = {}, {}, {}, {}
        if n + 1 < NT:
            postA[pos[0]] = [rdK(n + 1)]
            postA[pos[1]] = [rdV1(n + 1)]
            postA[pos[2]] = [rdV0(n + 1)]
            preB[pos[1]] = ["s_waitcnt lgkmcnt(0)"]
        if n % 4 == 3 and n + 1 < NT:
            c = (n + 1) // 4
            preA[0] = ["s_waitcnt vmcnt(0)\ns_barrier"]
            if c + 1 < 8:
                d = kv_dma(c + 1)
                postA[pos[1]] += d[:2]
                postA[pos[2]] += d[2:]
        if opts.get("prio"):
            preA.setdefault(0, []).insert(0, "s_setprio 1")
            preB.setdefault(0, []).insert(0, "s_setprio 0")
        phase(Sa, Sb, sm(O1, V1(n - 1), Sb + 8) if n else None, mf(Sb, K(n), Q1), sm(O0, V0(n), Sa), preA, postA)
        phase(Sb, Sa, sm(O0, V1(n), Sa + 8), mf(Sa, K(n + 1), Q0) if n + 1 < NT else None, sm(O1, V0(n), Sb), preB, postB)
    A(sm(O1, V1(NT - 1), Sb + 8))
    stamp("loop done")
    M0, M1 = R.alloc(), R.alloc()
    A(f"v_mov_b32 v{M0}, 0\nv_mov_b32 v{M1}, 0")
    A(f"s_mov_b32 s{sT0}, {fbits(2.0 ** -32)}\ns_mov_b32 s{sT1}, {fbits(2.0 ** 40)}")
    A(f"v_cmp_nge_f32 vcc, v{O0 + 8}, s{sT0}\nv_cmp_nle_f32 {sr(sT2, 2)}, v{O0 + 8}, s{sT1}\ns_or_b64 vcc, vcc, {sr(sT2, 2)}")
    A(f"v_cmp_nge_f32 {sr(sT2, 2)}, v{O1 + 8}, s{sT0}\ns_or_b64 vcc, vcc, {sr(sT2, 2)}")
    A(f"v_cmp_nle_f32 {sr(sT2, 2)}, v{O1 + 8}, s{sT1}\ns_or_b64 vcc, vcc, {sr(sT2, 2)}")
    if opts.get("force_slow"):
        A("s_mov_b64 vcc, -1")
    A("s_nop 0\ns_cbranch_vccnz L_slow")
    A("L_back:")

    snap = R.snapshot()
    ot = R.alloc(10)
    A(f"s_mul_i32 s{sT0}, s{sW}, 2560\ns_add_u32 s{sT0}, s{sT0}, {PX}\nv_add_u32 v{t0}, s{sT0}, v{vX16}")
    A(f"v_lshlrev_b32 v{t1}, 3, v{vL}\nv_add_u32 v{t1}, s{sT0}, v{t1}")
    A(f"s_xor_b32 s{sT1}, s{sW}, 4\ns_mul_i32 s{sT1}, s{sT1}, 2560\ns_add_u32 s{sT1}, s{sT1}, {PX}\nv_add_u32 v{t2}, s{sT1}, v{vX16}")
    A(f"v_lshlrev_b32 v{t3}, 3, v{vL}\nv_add_u32 v{t3}, s{sT1}, v{t3}")
    A(f"v_mov_b32 v{O0 + 9}, v{M0}\nv_mov_b32 v{O1 + 9}, v{M1}")
    A(f"s_cmp_eq_u32 s{sKH}, 0\ns_cbranch_scc1 L_send1")
    A(f"ds_write_b128 v{t0}, {vr(O0, 4)}\nds_write_b128 v{t0}, {vr(O0 + 4, 4)} offset:1024\nds_write_b64 v{t1}, {vr(O0 + 8, 2)} offset:2048")
    for i in range(0, 10, 2):
        A(f"v_pk_mov_b32 {vr(O0 + i, 2)}, {vr(O1 + i, 2)}, {vr(O1 + i, 2)} op_sel:[0,1]")
    A("s_branch L_sent")
    A("L_send1:")
    A(f"ds_write_b128 v{t0}, {vr(O1, 4)}\nds_write_b128 v{t0}, {vr(O1 + 4, 4)} offset:1024\nds_write_b64 v{t1}, {vr(O1 + 8, 2)} offset:2048")
    A("L_sent:")
    A("s_waitcnt lgkmcnt(0)\ns_barrier")
    A(f"ds_read_b64 {vr(ot + 8, 2)}, v{t3} offset:2048\nds_read_b128 {vr(ot, 4)}, v{t2}\nds_read_b128 {vr(ot + 4, 4)}, v{t2} offset:1024")
    A(f"s_lshl_b32 s{sT0}, s{sQG}, 3\ns_add_u32 s{sT0}, s{sT0}, s{sHG}")
    A(f"s_lshl_b32 s{sT1}, s{sT0}, 3\ns_add_u32 s{sT1}, s{sT1}, s{sW}\ns_lshl_b32 s{sT1}, s{sT1}, 10\ns_add_u32 s{sT1}, s{sT1}, {WS_O}")
    A(f"s_lshl_b32 s{sT0}, s{sT0}, 7\ns_lshl_b32 s{sT2}, s{sW}, 2\ns_add_u32 s{sT0}, s{sT0}, s{sT2}\ns_add_u32 s{sT0}, s{sT0}, {WS_FLAG2}")
    A("s_waitcnt lgkmcnt(2)")
    A(f"v_max_f32 v{t0}, v{O0 + 9}, v{ot + 9}\nv_sub_f32 v{t1}, v{O0 + 9}, v{t0}\nv_sub_f32 v{t2}, v{ot + 9}, v{t0}")
    A(f"v_exp_f32 v{t1}, v{t1}\nv_exp_f32 v{t2}, v{t2}")
    A(f"v_mul_f32 v{t0}, v{O0 + 8}, v{t1}\nv_fmac_f32 v{t0}, v{ot + 8}, v{t2}\nv_rcp_f32 v{t0}, v{t0}")
    A(f"v_mul_f32 v{t1}, v{t1}, v{t0}\nv_mul_f32 v{t2}, v{t2}, v{t0}")
    A("s_waitcnt lgkmcnt(0)")
    for i in range(8):
        A(f"v_mul_f32 v{O0 + i}, v{O0 + i}, v{t1}")
    for i in range(8):
        A(f"v_fmac_f32 v{O0 + i}, v{ot + i}, v{t2}")
    for j in range(4):
        A(f"v_cvt_pk_bf16_f32 v{ot + j}, v{O0 + 2 * j}, v{O0 + 2 * j + 1}")
    A(f"buffer_store_dwordx4 {vr(ot, 4)}, v{vX16}, {sr(SRD_WS, 4)}, s{sT1} offen sc1")
    A(f"v_mov_b32 v{t0}, s{sNONCE}\nv_mov_b32 v{t1}, 0")
    A(f"s_mov_b64 {sr(sEX, 2)}, exec\ns_waitcnt vmcnt(0)\ns_mov_b64 exec, 1")
    A(f"buffer_store_dword v{t0}, v{t1}, {sr(SRD_WS, 4)}, s{sT0} offen sc1")
    A(f"s_lshl_b32 s{sT0}, s{sQG}, 3\ns_add_u32 s{sT0}, s{sT0}, s{sW}\ns_lshl_b32 s{sT1}, s{sT0}, 7\ns_add_u32 s{sT1}, s{sT1}, {WS_FLAG2}")
    A(f"s_mov_b64 exec, 0xff\nv_lshlrev_b32 v{t2}, 2, v{vL}\ns_mov_b32 s{sCNT}, 400000")
    A("L_poll2:")
    A(f"buffer_load_dword v{t3}, v{t2}, {sr(SRD_WS, 4)}, s{sT1} offen sc1\ns_waitcnt vmcnt(0)")
    A(f"v_cmp_ne_u32 vcc, s{sNONCE}, v{t3}")
    A(f"s_nop 4\ns_cbranch_vccz L_poll2_done\ns_sub_u32 s{sCNT}, s{sCNT}, 1\ns_cmp_lg_u32 s{sCNT}, 0\ns_cbranch_scc1 L_poll2")
    A("L_poll2_done:")
    A(f"s_mov_b64 exec, {sr(sEX, 2)}")
    stamp("o flags")
    A(f"s_lshl_b32 s{sT0}, s{sT0}, 13\ns_add_u32 s{sT0}, s{sT0}, {WS_O}\ns_lshl_b32 s{sT1}, s{sW}, 12")
    for pw in range(8):
        slot = ((pw >> 1) & 1) * 32 + 2 * (pw & 1) + (pw >> 2)
        A(f"s_add_u32 s{sT2}, s{sT1}, {OS + slot * 1024}\ns_mov_b32 m0, s{sT2}")
        dma(SRD_WS, vX16, f"s{sT0}", 0, " sc1")
        A(f"s_add_u32 s{sT0}, s{sT0}, 1024")
    R.restore(snap)
    for r_, n_ in ((Sa, 16), (Sb, 16), (O1, 16), (KV, 24)):
        R.free(r_, n_)
    aA, aB = R.alloc(), R.alloc()
    fa, fb = R.alloc(4 * NB), R.alloc(4 * NB)
    acc = R.alloc(16)
    A(f"s_and_b32 s{sT0}, s{sW}, 1\ns_bfe_u32 s{sT1}, s{sW}, 0x10001\ns_lshl_b32 s{sT2}, s{sT1}, 15")
    tr_addr(aA, WO, sT0, 2)
    A(f"v_add_u32 v{aB}, s{sT2}, v{vX16}")
    A("s_waitcnt vmcnt(0)\ns_barrier")
    A(f"s_cmp_ge_u32 s{sW}, 4\ns_cbranch_scc1 L_noproj")

    def oA(ks):
        d = fa + 4 * (ks % NB)
        A(f"ds_read_b64_tr_b16 {vr(d, 2)}, v{aA} offset:{2048 * ks}\nds_read_b64_tr_b16 {vr(d + 2, 2)}, v{aA} offset:{2048 * ks + 1024}")

    def oB(ks):
        A(f"ds_read_b128 {vr(fb + 4 * (ks % NB), 4)}, v{aB} offset:{OS + 1024 * ks}")

    proj(oA, oB)
    A(f"s_lshl_b32 s{sT1}, s{sT1}, 5\nv_add_u32 v{t0}, s{sT1}, v{vL31}\nv_mul_u32_u24 v{t0}, 144, v{t0}\nv_lshl_add_u32 v{t0}, v{vH}, 3, v{t0}")
    A(f"s_lshl_b32 s{sT0}, s{sT0}, 6\ns_add_u32 s{sT0}, s{sT0}, {OT}\nv_add_u32 v{t0}, s{sT0}, v{t0}")
    for j in range(8):
        A(f"v_cvt_pk_bf16_f32 v{fa + j}, v{acc + 2 * j}, v{acc + 2 * j + 1}")
    for a in range(4):
        A(f"ds_write_b64 v{t0}, {vr(fa + 2 * a, 2)} offset:{16 * a}")
    A("L_noproj:")
    A(f"v_lshrrev_b32 v{t1}, 3, v0\nv_and_b32 v{t2}, 7, v0\nv_mul_u32_u24 v{t0}, 144, v{t1}\nv_lshl_add_u32 v{t0}, v{t2}, 4, v{t0}")
    A(f"v_lshlrev_b32 v{t1}, 11, v{t1}\nv_lshl_add_u32 v{t1}, v{t2}, 4, v{t1}\nv_add_u32 v{t0}, {OT}, v{t0}")
    A(f"s_lshl_b32 s{sT0}, s{sQG}, 17\ns_lshl_b32 s{sT1}, s{sHG}, 7\ns_add_u32 s{sT0}, s{sT0}, s{sT1}")
    A("s_waitcnt lgkmcnt(0)\ns_barrier")
    A(f"ds_read_b128 {vr(fb, 4)}, v{t0}\ns_waitcnt lgkmcnt(0)")
    A(f"buffer_store_dwordx4 {vr(fb, 4)}, v{t1}, {sr(SRD_OUT, 4)}, s{sT0} offen")
    if prof:
        A("s_waitcnt vmcnt(0)")
        stamp("end")
        A("s_waitcnt lgkmcnt(0)")
        A(f"s_lshl_b32 s{sT0}, s2, 3\ns_add_u32 s{sT0}, s{sT0}, s{sW}\ns_lshl_b32 s{sT0}, s{sT0}, 6\ns_add_u32 s{sT0}, s{sT0}, {WS_DBG + (8 << 20)}")
        A(f"s_mov_b64 exec, 1\nv_mov_b32 v{t0}, 0")
        for n in range(nstamp[0]):
            A(f"v_mov_b32 v{t1}, s{STAMP0 + 2 * n}\nbuffer_store_dword v{t1}, v{t0}, {sr(SRD_WS, 4)}, s{sT0} offen offset:{4 * n}")
    A("L_end:")
    A("s_endpgm")

    A("L_slow:")
    A("s_nop 7\ns_nop 7")
    gV = t3
    A(f"v_lshlrev_b32 v{gV}, 4, v{vL31}\nv_lshl_add_u32 v{gV}, v{vH}, 8, v{gV}")
    A(f"v_mov_b32 v{M0}, 0xff800000\nv_mov_b32 v{M1}, 0xff800000")
    A(f"s_lshl_b32 s{sT4}, s{sKH}, 16\ns_add_u32 s{sT4}, s{sT4}, {WS_KV}\ns_mov_b32 s{sT0}, s{sT4}\ns_mov_b32 s{sCNT}, 32")
    A("L_slow1:")
    A(f"buffer_load_dwordx4 {vr(KV, 4)}, v{vX16}, {sr(SRD_WS, 4)}, s{sT0} offen sc1\ns_waitcnt vmcnt(0)")
    A(mf(Sa, KV, Q0)), A(mf(Sb, KV, Q1))
    for S, M in ((Sa, M0), (Sb, M1)):
        for i in range(0, 16, 2):
            A(f"v_max3_f32 v{M}, v{S + i}, v{S + i + 1}, v{M}")
    A(f"s_add_u32 s{sT0}, s{sT0}, 2048\ns_sub_u32 s{sCNT}, s{sCNT}, 1\ns_cmp_lg_u32 s{sCNT}, 0\ns_cbranch_scc1 L_slow1")
    for M in (M0, M1):
        A(f"v_mov_b32 v{t0}, v{M}\nv_permlane32_swap_b32 v{t0}, v{M}\nv_max_f32 v{M}, v{M}, v{t0}")
    for i in range(16):
        A(f"v_mov_b32 v{O0 + i}, 0\nv_mov_b32 v{O1 + i}, 0")
    for i in range(8):
        A(f"v_mov_b32 v{KV + 4 + i}, 0x3f803f80")
    A(f"s_mov_b32 s{sT0}, s{sT4}\ns_mov_b32 s{sCNT}, 32\ns_mov_b32 s{sT2}, 0xffff\ns_mov_b32 s{sT3}, 0xffff")
    A("L_slow2:")
    A(f"buffer_load_dwordx4 {vr(KV, 4)}, v{vX16}, {sr(SRD_WS, 4)}, s{sT0} offen sc1")
    A(f"s_mov_b64 exec, {sr(sT2, 2)}")
    A(f"buffer_load_dwordx4 {vr(KV + 4, 4)}, v{gV}, {sr(SRD_WS, 4)}, s{sT0} offen offset:1024 sc1")
    A(f"buffer_load_dwordx4 {vr(KV + 8, 4)}, v{gV}, {sr(SRD_WS, 4)}, s{sT0} offen offset:1536 sc1")
    A("s_mov_b64 exec, -1\ns_waitcnt vmcnt(0)")
    A(mf(Sa, KV, Q0)), A(mf(Sb, KV, Q1))
    for S, M, O in ((Sa, M0, O0), (Sb, M1, O1)):
        for i in range(16):
            A(f"v_sub_f32 v{S + i}, v{S + i}, v{M}")
        for i in range(16):
            A(f"v_exp_f32 v{S + i}, v{S + i}")
        A(sm(O, KV + 4, S)), A(sm(O, KV + 8, S + 8))
    A(f"s_nop 7\ns_nop 7\ns_add_u32 s{sT0}, s{sT0}, 2048\ns_sub_u32 s{sCNT}, s{sCNT}, 1\ns_cmp_lg_u32 s{sCNT}, 0\ns_cbranch_scc1 L_slow2")
    A("s_branch L_back")
    A("L_codeend:")

    body = "\n".join(("    " + l if not l.endswith(":") else l) for l in A.finish())
    head = open("concat_heads__grouped_kv_mqa__ssm_conv_s4__prompt.s.ref").read().split("; @launch")[0]
    nv = (R.peak + 7) // 8 * 8
    nv = max(nv, 136)
    return f"""{head}; @launch grid=(256,1,1) block=(512,1,1) lds={LDS_SIZE}
.amdgcn_target "amdgcn-amd-amdhsa--gfx950"
.text
.globl {KNAME}
.p2align 8
.type {KNAME},@function
{KNAME}:
{body}
.section .rodata,"a"
.p2align 6
.amdhsa_kernel {KNAME}
  .amdhsa_next_free_vgpr {nv}
  .amdhsa_next_free_sgpr 102
  .amdhsa_accum_offset {nv}
  .amdhsa_group_segment_fixed_size 0
  .amdhsa_kernarg_size 136
  .amdhsa_user_sgpr_count 2
  .amdhsa_user_sgpr_kernarg_segment_ptr 1
  .amdhsa_system_sgpr_workgroup_id_x 1
  .amdhsa_float_denorm_mode_32 3
.end_amdhsa_kernel
"""


if __name__ == "__main__":
    out = sys.argv[1] if len(sys.argv) > 1 else "concat_heads__grouped_kv_mqa__ssm_conv_s4__prompt.s"
    open(out, "w").write(generate())
    print("written", out)
```
